```python
import torch

def _softmax(x, axis=-1):
    return torch.softmax(x, dim=axis)
def _gelu(x):
    return torch.nn.functional.gelu(x, approximate="tanh")
def _silu(x):
    return torch.nn.functional.silu(x)
def _sigmoid(x):
    return torch.sigmoid(x)
def _layernorm(x, axis=-1, eps=1e-5):
    m = x.mean(dim=axis, keepdim=True)
    v = x.var(dim=axis, keepdim=True, unbiased=False)
    return (x - m) / torch.sqrt(v + eps)
def _scatter_add(tgt, idx, src, axis=0):
    return tgt.clone().index_add_(axis, idx, src)
def _segment_sum(src, seg, n):
    out = torch.zeros((n,) + src.shape[1:], dtype=src.dtype)
    return out.index_add_(0, seg, src)
def _pad(x, pw):
    flat = tuple(v for pair in reversed(pw) for v in pair)
    return torch.nn.functional.pad(x, flat)

kernel_name = 'parallel_sum__gqa_block_cached__glu_gated_reglu__decode'

def setup_inputs():

    _w = (lambda a: (lambda t: t.to(torch.bfloat16) if t.is_floating_point() else t)(torch.as_tensor(a)))
    def _A_setup():
        B, Sq, D = 8, 1, 512
        Hq, Hkv, Sk, Dh = 32, 32, 4096, 128
        assert Hq % Hkv == 0, (Hq, Hkv)
        return {
            "x": _w((lambda *s: torch.randn(*s, dtype=torch.bfloat16) * 0.05)(B, Sq, D)),
            "k_cache": _w((lambda *s: torch.randn(*s, dtype=torch.bfloat16) * 1.6)(B, Hkv, Sk, Dh)),
            "v_cache": _w((lambda *s: torch.randn(*s, dtype=torch.bfloat16) * 0.8)(B, Hkv, Sk, Dh)),
            "wq": _w((lambda *s: torch.randn(*s, dtype=torch.bfloat16) * 1.6)(D, Hq * Dh) * (D ** -0.5)),
            "wo": _w((lambda *s: torch.randn(*s, dtype=torch.bfloat16) * 0.8)(Hq * Dh, D) * ((Hq * Dh) ** -0.5)),
        }
    _A_in = _A_setup()

    def _B_setup():
        B, S, D, F = 8, 1, 512, 1376
        return {
            "x": _w((lambda *s: torch.randn(*s, dtype=torch.bfloat16) * 0.05)(B, S, D)),
            "W_gate": _w((lambda *s: torch.randn(*s, dtype=torch.bfloat16) * 0.4)(D, F) * (2.0 / D) ** 0.5),
            "W_up": _w((lambda *s: torch.randn(*s, dtype=torch.bfloat16) * 0.4)(D, F) * (2.0 / D) ** 0.5),
            "W_down": _w((lambda *s: torch.randn(*s, dtype=torch.bfloat16) * 0.4)(F, D) * (1.0 / F) ** 0.5),
        }
    _B_in = _B_setup()

    return {
        "A_x": _A_in["x"],
        "A_k_cache": _A_in["k_cache"],
        "A_v_cache": _A_in["v_cache"],
        "A_wq": _A_in["wq"],
        "A_wo": _A_in["wo"],
        "B_x": _B_in["x"],
        "B_W_gate": _B_in["W_gate"],
        "B_W_up": _B_in["W_up"],
        "B_W_down": _B_in["W_down"],
    }

def reference(A_x, A_k_cache, A_v_cache, A_wq, A_wo, B_x, B_W_gate, B_W_up, B_W_down):
    def _A_ref(x, k_cache, v_cache, wq, wo):
        B, Sq, D = x.shape
        Hq, Dh = 32, 128
        Hkv = k_cache.shape[1]
        rep = Hq // Hkv
        q = (lambda x, *d: x.permute(*d))((x @ wq).reshape(B, Sq, Hq, Dh), 0, 2, 1, 3)
        k = (lambda x, n, axis: torch.repeat_interleave(x, n, dim=axis))(k_cache, rep, axis=1)
        v = (lambda x, n, axis: torch.repeat_interleave(x, n, dim=axis))(v_cache, rep, axis=1)
        scores = torch.einsum("bhqd,bhkd->bhqk", q, k) * (Dh ** -0.5)
        p = _softmax(scores, axis=-1)
        o = torch.einsum("bhqk,bhkd->bhqd", p, v)
        return (lambda x, *d: x.permute(*d))(o, 0, 2, 1, 3).reshape(B, Sq, Hq * Dh) @ wo

    def _B_ref(x, W_gate, W_up, W_down):
        gate = torch.einsum("bsd,df->bsf", x, W_gate)
        up = torch.einsum("bsd,df->bsf", x, W_up)
        gate = gate * (lambda x, dt: x.to(dt))(gate > 0, gate.dtype)
        h = gate * up
        return torch.einsum("bsf,fd->bsd", h, W_down)

    x = A_x
    xn = _layernorm(x, axis=-1)
    return x + _A_ref(xn, A_k_cache, A_v_cache, A_wq, A_wo) + _B_ref(xn, B_W_gate, B_W_up, B_W_down)
```

```python
import sys

NAME = "parallel_sum__gqa_block_cached__glu_gated_reglu__decode"
NT = " nt" if "--nt" in sys.argv else ""
OUTF = None
for a in sys.argv[1:]:
    if a.startswith("--out="):
        OUTF = a[6:]

L = []
def e(s):
    L.append("    " + s)
def lab(s):
    L.append(s + ":")
def c(s):
    L.append("    ; " + s)

XN   = 0
PQ   = 2048
PG   = PQ + 32768
PU   = PG + 32768
P2Q  = PU + 32768
P2G  = P2Q + 2048
P2U  = P2G + 1024
MARR = P2U + 1024
LARR = MARR + 256
FLAG = LARR + 256
LDS_BYTES = FLAG + 256
O1 = PQ; O2 = PG; Y1 = PU

sB, sH, sW = 4, 5, 6
K_, V_, WQ_, WO_, WG_, WU_, WD_, X_, OUT_, DBG_, WS_ = 40, 44, 48, 52, 56, 60, 64, 68, 72, 76, 80
sCS, sNC = 90, 91
def srd(r): return f"s[{r}:{r+3}]"

vTID, vL, vK = 0, 1, 2
BUF = 32
SC = 64
vQ = 16
ACC = 20

def rnd(v):
    e(f"v_cvt_pk_bf16_f32 v{v}, v{v}, v{v}")
    e(f"v_lshlrev_b32 v{v}, 16, v{v}")

def row_reduce_add(v):
    for st in (8, 4, 2, 1):
        e("s_nop 1")
        e(f"v_add_f32_dpp v{v}, v{v}, v{v} row_ror:{st} row_mask:0xf bank_mask:0xf")

def wave_sum_from_rows(v, dst):
    e("s_nop 1")
    e(f"v_readlane_b32 s84, v{v}, 0")
    e(f"v_readlane_b32 s85, v{v}, 16")
    e(f"v_readlane_b32 s86, v{v}, 32")
    e(f"v_readlane_b32 s87, v{v}, 48")
    e("s_nop 1")
    e(f"v_mov_b32 v{dst}, s84")
    e(f"v_add_f32 v{dst}, s85, v{dst}")
    e(f"v_add_f32 v{dst}, s86, v{dst}")
    e(f"v_add_f32 v{dst}, s87, v{dst}")

def unpack(dst_lo, dst_hi, src):
    e(f"v_lshlrev_b32 v{dst_lo}, 16, v{src}")
    e(f"v_and_b32 v{dst_hi}, 0xffff0000, v{src}")

def make_srd(r, plo, phi, off_sgpr, nbytes_sgpr_or_imm):
    if off_sgpr is None:
        e(f"s_mov_b32 s{r}, s{plo}")
        e(f"s_and_b32 s{r+1}, s{phi}, 0xffff")
    else:
        e(f"s_add_u32 s{r}, s{plo}, s{off_sgpr}")
        e(f"s_addc_u32 s{r+1}, s{phi}, 0")
        e(f"s_and_b32 s{r+1}, s{r+1}, 0xffff")
    e(f"s_mov_b32 s{r+2}, {nbytes_sgpr_or_imm}")
    e(f"s_mov_b32 s{r+3}, 0x00020000")

lab(f"{NAME}_kernel")
e("s_cmp_ge_u32 s2, 256")
e("s_cbranch_scc1 L_end")
e("s_load_dwordx16 s[16:31], s[0:1], 0")
e("s_load_dwordx8 s[32:39], s[0:1], 64")
e(f"s_lshr_b32 s{sB}, s2, 5")
e(f"s_and_b32 s{sH}, s2, 31")
e(f"v_and_b32 v{vL}, 63, v{vTID}")
e(f"v_lshrrev_b32 v3, 6, v{vTID}")
e("s_nop 0")
e(f"v_readfirstlane_b32 s{sW}, v3")
e(f"s_min_u32 s7, s{sH}, 12")
e(f"s_mul_i32 s{sCS}, s{sH}, 5")
e(f"s_add_u32 s{sCS}, s{sCS}, s7")
e(f"s_cmp_lt_u32 s{sH}, 12")
e(f"s_cselect_b32 s{sNC}, 6, 5")
e("s_waitcnt lgkmcnt(0)")
e("s_lshl_b32 s7, s2, 20")
make_srd(K_, 18, 19, 7, 1048576)
make_srd(V_, 20, 21, 7, 1048576)
e(f"s_lshl_b32 s7, s{sH}, 8")
e("s_sub_u32 s8, 4194304, s7")
make_srd(WQ_, 22, 23, 7, "s8")
e(f"s_lshl_b32 s7, s{sH}, 17")
make_srd(WO_, 24, 25, 7, 131072)
make_srd(WG_, 28, 29, None, 512 * 2752)
make_srd(WU_, 30, 31, None, 512 * 2752)
make_srd(WD_, 32, 33, None, 1376 * 1024)
e(f"s_lshl_b32 s7, s{sB}, 10")
make_srd(X_, 16, 17, 7, 1024)
make_srd(OUT_, 34, 35, 7, 1024)
make_srd(DBG_, 36, 37, None, 256)
make_srd(WS_, 38, 39, None, 256 * 2048)

e(f"v_lshlrev_b32 v3, 4, v{vL}")
e(f"buffer_load_dwordx4 v[4:7], v3, {srd(X_)}, 0 offen")
e(f"s_lshl_b32 s7, s{sW}, 16")
e(f"v_add_u32 v{vK}, s7, v3")
e(f"v_lshrrev_b32 v8, 4, v{vL}")
e(f"s_lshl_b32 s7, s{sW}, 5")
e(f"v_add_u32 v8, s7, v8")
e(f"v_lshlrev_b32 v9, 13, v8")
e(f"v_and_b32 v10, 15, v{vL}")
e(f"v_lshl_add_u32 v9, v10, 4, v9")
for j in range(8):
    e(f"s_mov_b32 s7, {j*32768}")
    e(f"buffer_load_dwordx4 v[{SC+4*j}:{SC+4*j+3}], v9, {srd(WQ_)}, s7 offen")
e(f"v_lshrrev_b32 v11, 3, v{vL}")
e(f"s_lshl_b32 s7, s{sW}, 3")
e(f"v_add_u32 v11, s7, v11")
e("s_movk_i32 s7, 2752")
e("v_mul_lo_u32 v12, v11, s7")
e(f"v_and_b32 v13, 7, v{vL}")
e(f"v_add_u32 v13, s{sCS}, v13")
e("v_lshl_add_u32 v12, v13, 4, v12")
for i in range(4):
    e(f"s_mov_b32 s7, {i*128*2752}")
    e(f"buffer_load_dwordx4 v[{SC+32+4*i}:{SC+32+4*i+3}], v12, {srd(WG_)}, s7 offen")
for i in range(4):
    e(f"s_mov_b32 s7, {i*128*2752}")
    e(f"buffer_load_dwordx4 v[{SC+48+4*i}:{SC+48+4*i+3}], v12, {srd(WU_)}, s7 offen")

def stream_load(i):
    b = BUF + 4 * (i % 8)
    if i < 128:
        r = K_ if i < 64 else V_
        ii = i % 64
        so = (ii // 4) * 4096
        if so == 0:
            sreg = "0"
        else:
            e(f"s_mov_b32 s92, {so}")
            sreg = "s92"
        off = (ii % 4) * 1024
        e(f"buffer_load_dwordx4 v[{b}:{b+3}], v{vK}, {srd(r)}, {sreg} offen offset:{off}{NT}" if off else
          f"buffer_load_dwordx4 v[{b}:{b+3}], v{vK}, {srd(r)}, {sreg} offen{NT}")
    elif i < 136:
        ii = i - 128
        if ii < 4:
            off = ii * 1024
            e(f"buffer_load_dwordx4 v[{b}:{b+3}], v31, {srd(WO_)}, 0 offen" + (f" offset:{off}" if off else ""))
        else:
            off = (ii - 4) * 1024
            e("s_movk_i32 s92, 4096")
            e(f"buffer_load_dwordx4 v[{b}:{b+3}], v31, {srd(WO_)}, s92 offen" + (f" offset:{off}" if off else ""))

e(f"s_lshl_b32 s7, s{sW}, 13")
e(f"v_add_u32 v31, s7, v3")
for i in range(8):
    stream_load(i)

e("s_waitcnt vmcnt(24)")
for k in range(4):
    unpack(8 + 2 * k, 9 + 2 * k, 4 + k)
e("v_add_f32 v28, v8, v9")
e("v_add_f32 v29, v10, v11")
e("v_add_f32 v30, v12, v13")
e("v_add_f32 v28, v28, v29")
e("v_add_f32 v29, v14, v15")
e("v_add_f32 v30, v30, v29")
e("v_add_f32 v28, v28, v30")
row_reduce_add(28)
wave_sum_from_rows(28, 29)
e("v_mul_f32 v29, 0x3b000000, v29")
e("v_sub_f32 v4, v8, v29")
e("v_mul_f32 v28, v4, v4")
for k in range(1, 8):
    e(f"v_sub_f32 v4, v{8+k}, v29")
    e("v_fmac_f32 v28, v4, v4")
row_reduce_add(28)
wave_sum_from_rows(28, 30)
e("v_mul_f32 v30, 0x3b000000, v30")
rnd(29)
rnd(30)
e("v_add_f32 v30, 0x3727c5ac, v30")
rnd(30)
e("v_sqrt_f32 v30, v30")
e("s_nop 0")
rnd(30)
e("v_rcp_f32 v30, v30")
e("s_nop 0")
for k in range(8):
    e(f"v_sub_f32 v{8+k}, v{8+k}, v29")
    rnd(8 + k)
    e(f"v_mul_f32 v{8+k}, v{8+k}, v30")
    rnd(8 + k)
e(f"v_lshlrev_b32 v3, 5, v{vL}")
e(f"ds_write_b128 v3, v[8:11] offset:{XN}")
e(f"ds_write_b128 v3, v[12:15] offset:{XN+16}")
e("s_waitcnt lgkmcnt(0)")
e(f"v_lshrrev_b32 v3, 4, v{vL}")
e(f"s_lshl_b32 s7, s{sW}, 5")
e("v_add_u32 v3, s7, v3")
e("v_lshlrev_b32 v3, 2, v3")
for j in range(8):
    e(f"ds_read_b32 v{8+j}, v3 offset:{XN+16*j}")
e(f"v_lshrrev_b32 v4, 3, v{vL}")
e(f"s_lshl_b32 s7, s{sW}, 3")
e("v_add_u32 v4, s7, v4")
e("v_lshlrev_b32 v4, 2, v4")
for i in range(4):
    e(f"ds_read_b32 v{28+i if i<3 else 3}, v4 offset:{XN+512*i}")
FX = [28, 29, 30, 3]
for k in range(8):
    e(f"v_mov_b32 v{ACC+k}, 0")
e("s_waitcnt vmcnt(16) lgkmcnt(0)")
for j in range(8):
    for k in range(4):
        unpack(4, 5, SC + 4 * j + k)
        e(f"v_fmac_f32 v{ACC+2*k}, v{8+j}, v4")
        e(f"v_fmac_f32 v{ACC+2*k+1}, v{8+j}, v5")
e(f"v_lshrrev_b32 v4, 4, v{vL}")
e(f"s_lshl_b32 s7, s{sW}, 2")
e("v_add_u32 v4, s7, v4")
e("v_lshlrev_b32 v4, 9, v4")
e(f"v_and_b32 v5, 15, v{vL}")
e("v_lshl_add_u32 v4, v5, 5, v4")
e(f"v_mov_b32 v7, v4")
e(f"ds_write_b128 v4, v[{ACC}:{ACC+3}] offset:{PQ}")
e(f"ds_write_b128 v4, v[{ACC+4}:{ACC+7}] offset:{PQ+16}")
e(f"v_lshrrev_b32 v4, 3, v{vL}")
e(f"s_lshl_b32 s7, s{sW}, 3")
e("v_add_u32 v4, s7, v4")
e("v_lshlrev_b32 v4, 8, v4")
e(f"v_and_b32 v5, 7, v{vL}")
e("v_lshl_add_u32 v6, v5, 5, v4")
e("s_waitcnt vmcnt(8)")
for m in range(2):
    for k in range(8):
        e(f"v_mov_b32 v{8+k}, 0")
    for i in range(4):
        for k in range(4):
            unpack(4, 5, SC + 32 + 16 * m + 4 * i + k)
            e(f"v_fmac_f32 v{8+2*k}, v{FX[i]}, v4")
            e(f"v_fmac_f32 v{8+2*k+1}, v{FX[i]}, v5")
    base = PG if m == 0 else PU
    e(f"v_add_u32 v4, {base}, v6")
    e("ds_write_b128 v4, v[8:11]")
    e("ds_write_b128 v4, v[12:15] offset:16")
e("s_waitcnt lgkmcnt(0)")
e("s_barrier")
e(f"s_cmp_ge_u32 s{sW}, 8")
e("s_cbranch_scc1 L_st2_ffn")
e(f"v_and_b32 v4, 127, v{vTID}")
e(f"v_lshrrev_b32 v5, 7, v{vTID}")
e("v_lshlrev_b32 v6, 13, v5")
e("v_lshl_add_u32 v6, v4, 2, v6")
for i in range(16):
    e(f"ds_read_b32 v{BUF+64+i if False else 64+i}, v6 offset:{PQ+512*i}")
e("s_waitcnt lgkmcnt(0)")
for i in range(1, 16):
    e(f"v_add_f32 v64, v64, v{64+i}")
e("v_lshlrev_b32 v6, 9, v5")
e("v_lshl_add_u32 v6, v4, 2, v6")
e(f"v_add_u32 v6, {P2Q}, v6")
e("ds_write_b32 v6, v64")
e("s_branch L_st2_done")
lab("L_st2_ffn")
e(f"v_subrev_u32 v4, 512, v{vTID}")
e("v_lshrrev_b32 v5, 8, v4")
e("v_and_b32 v8, 63, v4")
e("v_bfe_u32 v9, v4, 6, 2")
e("v_lshlrev_b32 v6, 15, v5")
e("v_lshl_add_u32 v6, v9, 13, v6")
e("v_lshl_add_u32 v6, v8, 2, v6")
e(f"v_add_u32 v6, {PG}, v6")
for i in range(32):
    e(f"ds_read_b32 v{64+i}, v6 offset:{256*i}")
    if i % 8 == 7:
        e("s_waitcnt lgkmcnt(0)")
for i in range(1, 32):
    e(f"v_add_f32 v64, v64, v{64+i}")
e("v_lshlrev_b32 v6, 10, v5")
e("v_lshl_add_u32 v6, v9, 8, v6")
e("v_lshl_add_u32 v6, v8, 2, v6")
e(f"v_add_u32 v6, {P2G}, v6")
e("ds_write_b32 v6, v64")
lab("L_st2_done")
e("s_waitcnt lgkmcnt(0)")
e("s_barrier")
e(f"v_and_b32 v4, 15, v{vL}")
e("v_lshlrev_b32 v4, 5, v4")
e(f"v_add_u32 v4, {P2Q}, v4")
for p in range(4):
    e(f"ds_read_b128 v[{64+8*p}:{64+8*p+3}], v4 offset:{512*p}")
    e(f"ds_read_b128 v[{64+8*p+4}:{64+8*p+7}], v4 offset:{512*p+16}")
e("s_waitcnt lgkmcnt(0)")
for k in range(8):
    e(f"v_add_f32 v{64+k}, v{64+k}, v{72+k}")
    e(f"v_add_f32 v{80+k}, v{80+k}, v{88+k}")
    e(f"v_add_f32 v{64+k}, v{64+k}, v{80+k}")
for k in range(4):
    e(f"v_cvt_pk_bf16_f32 v{vQ+k}, v{64+2*k}, v{64+2*k+1}")
e("s_nop 1")

c("K phase")
for g in range(16):
    e("s_waitcnt vmcnt(4)")
    for k in range(4):
        for cc in range(4):
            i = 4 * g + cc
            b = BUF + 4 * (i % 8)
            src2 = "0" if k == 0 else f"v{SC+i}"
            e(f"v_dot2_f32_bf16 v{SC+i}, v{b+k}, v{vQ+k}, {src2}")
    for cc in range(4):
        stream_load(4 * g + cc + 8)
    for st in (8, 4, 2, 1):
        for cc in range(4):
            i = 4 * g + cc
            e(f"v_add_f32_dpp v{SC+i}, v{SC+i}, v{SC+i} row_ror:{st} row_mask:0xf bank_mask:0xf")
    for cc in range(4):
        i = SC + 4 * g + cc
        e(f"v_cvt_pk_bf16_f32 v{i}, v{i}, v{i}")
    for cc in range(4):
        i = SC + 4 * g + cc
        e(f"v_lshlrev_b32 v{i}, 16, v{i}")
    for cc in range(4):
        i = SC + 4 * g + cc
        e(f"v_mul_f32 v{i}, 0x3db504f3, v{i}")
    for cc in range(4):
        i = SC + 4 * g + cc
        e(f"v_cvt_pk_bf16_f32 v{i}, v{i}, v{i}")
    for cc in range(4):
        i = SC + 4 * g + cc
        e(f"v_lshlrev_b32 v{i}, 16, v{i}")

c("row softmax")
e(f"v_max3_f32 v28, v{SC}, v{SC+1}, v{SC+2}")
for i in range(3, 63, 2):
    e(f"v_max3_f32 v28, v28, v{SC+i}, v{SC+i+1}")
e(f"v_max_f32 v28, v28, v{SC+63}")
e("v_mul_f32 v29, 0x3fb8aa3b, v28")
e("v_mov_b32 v30, 0")
e("s_mov_b32 s7, 0x3fb8aa3b")
for i in range(64):
    e(f"v_fma_f32 v{SC+i}, v{SC+i}, s7, -v29")
for i in range(64):
    e(f"v_exp_f32 v{SC+i}, v{SC+i}")
e("s_nop 0")
for i in range(64):
    e(f"v_add_f32 v30, v30, v{SC+i}")
for k in range(8):
    e(f"v_mov_b32 v{ACC+k}, 0")

c("V phase")
for i in range(64):
    e("s_waitcnt vmcnt(7)")
    b = BUF + 4 * (i % 8)
    for k in range(4):
        unpack(8 + 2 * k, 9 + 2 * k, b + k)
    stream_load(64 + i + 8)
    for k in range(8):
        e(f"v_fmac_f32 v{ACC+k}, v{SC+i}, v{8+k}")

c("epilogue")
e(f"s_lshl_b32 s7, s{sCS}, 3")
e(f"s_mul_i32 s8, s{sW}, 3")
e("s_add_u32 s7, s7, s8")
e("s_lshl_b32 s7, s7, 10")
e(f"v_lshlrev_b32 v3, 4, v{vL}")
e(f"buffer_load_dwordx4 v[64:67], v3, {srd(WD_)}, s7 offen")
e(f"buffer_load_dwordx4 v[68:71], v3, {srd(WD_)}, s7 offen offset:1024")
e(f"buffer_load_dwordx4 v[72:75], v3, {srd(WD_)}, s7 offen offset:2048")
e(f"v_lshrrev_b32 v4, 4, v{vL}")
e(f"s_lshl_b32 s7, s{sW}, 2")
e("v_add_u32 v4, s7, v4")
e("v_lshlrev_b32 v4, 2, v4")
e(f"v_add_u32 v4, {MARR}, v4")
e("ds_write_b32 v4, v28")
e("s_waitcnt lgkmcnt(0)")
e("s_barrier")
e(f"v_mov_b32 v5, {MARR}")
for i in range(16):
    e(f"ds_read_b128 v[{76+4*i}:{76+4*i+3}], v5 offset:{16*i}") if False else None
e("v_mov_b32 v6, v28")
for half in range(2):
    for i in range(8):
        e(f"ds_read_b128 v[{80+4*i}:{80+4*i+3}], v5 offset:{128*half+16*i}")
    e("s_waitcnt lgkmcnt(0)")
    for i in range(0, 32, 2):
        e(f"v_max3_f32 v6, v6, v{80+i}, v{80+i+1}")
e("v_sub_f32 v6, v28, v6")
e("v_mul_f32 v6, 0x3fb8aa3b, v6")
e("v_exp_f32 v6, v6")
e("s_nop 0")
for k in range(8):
    e(f"v_mul_f32 v{ACC+k}, v{ACC+k}, v6")
e("v_mul_f32 v30, v30, v6")
e(f"ds_write_b128 v7, v[{ACC}:{ACC+3}] offset:{O1}")
e(f"ds_write_b128 v7, v[{ACC+4}:{ACC+7}] offset:{O1+16}")
e(f"ds_write_b32 v4, v30 offset:{LARR-MARR}")
e("s_waitcnt lgkmcnt(0)")
e("s_barrier")
e(f"v_and_b32 v4, 127, v{vTID}")
e(f"v_lshrrev_b32 v5, 7, v{vTID}")
e("v_lshlrev_b32 v6, 12, v5")
e("v_lshl_add_u32 v6, v4, 2, v6")
for i in range(8):
    e(f"ds_read_b32 v{80+i}, v6 offset:{O1+512*i}")
e("s_waitcnt lgkmcnt(0)")
for i in range(1, 8):
    e(f"v_add_f32 v80, v80, v{80+i}")
e("v_lshlrev_b32 v6, 9, v5")
e("v_lshl_add_u32 v6, v4, 2, v6")
e(f"ds_write_b32 v6, v80 offset:{O2}")
e("s_waitcnt lgkmcnt(0)")
e("s_barrier")
e(f"s_lshl_b32 s7, s{sW}, 5")
e(f"s_add_u32 s7, s7, {O2}")
e("v_mov_b32 v4, s7")
for p in range(8):
    e(f"ds_read_b128 v[{80+8*(p%4)}:{80+8*(p%4)+3}], v4 offset:{512*p}")
    e(f"ds_read_b128 v[{80+8*(p%4)+4}:{80+8*(p%4)+7}], v4 offset:{512*p+16}")
    if p == 3:
        e("s_waitcnt lgkmcnt(0)")
        for k in range(8):
            e(f"v_add_f32 v{8+k}, v{80+k}, v{88+k}")
            e(f"v_add_f32 v{8+k}, v{8+k}, v{96+k}")
            e(f"v_add_f32 v{8+k}, v{8+k}, v{104+k}")
e("s_waitcnt lgkmcnt(0)")
for k in range(8):
    e(f"v_add_f32 v{8+k}, v{8+k}, v{80+k}")
    e(f"v_add_f32 v{8+k}, v{8+k}, v{88+k}")
    e(f"v_add_f32 v{8+k}, v{8+k}, v{96+k}")
    e(f"v_add_f32 v{8+k}, v{8+k}, v{104+k}")
e(f"v_mov_b32 v5, {LARR}")
e("v_mov_b32 v6, 0")
for half in range(2):
    for i in range(8):
        e(f"ds_read_b128 v[{80+4*i}:{80+4*i+3}], v5 offset:{128*half+16*i}")
    e("s_waitcnt lgkmcnt(0)")
    for i in range(32):
        e(f"v_add_f32 v6, v6, v{80+i}")
e("v_rcp_f32 v6, v6")
e("s_nop 0")
for k in range(8):
    e(f"v_mul_f32 v{8+k}, v{8+k}, v6")
    rnd(8 + k)
e(f"s_mul_i32 s8, s{sW}, 3")
e("s_lshl_b32 s7, s8, 2")
e(f"s_add_u32 s7, s7, {P2G}")
e("v_mov_b32 v4, s7")
for t in range(3):
    for p in range(4):
        e(f"ds_read_b32 v{80+8*t+p}, v4 offset:{256*p+4*t}")
        e(f"ds_read_b32 v{84+8*t+p}, v4 offset:{1024+256*p+4*t}")
e("s_waitcnt lgkmcnt(0)")
e(f"s_lshl_b32 s9, s{sNC}, 3")
for t in range(3):
    g0 = 80 + 8 * t
    e(f"v_add_f32 v{g0}, v{g0}, v{g0+1}")
    e(f"v_add_f32 v{g0+2}, v{g0+2}, v{g0+3}")
    e(f"v_add_f32 v{g0}, v{g0}, v{g0+2}")
    e(f"v_add_f32 v{g0+4}, v{g0+4}, v{g0+5}")
    e(f"v_add_f32 v{g0+6}, v{g0+6}, v{g0+7}")
    e(f"v_add_f32 v{g0+4}, v{g0+4}, v{g0+6}")
    rnd(g0)
    rnd(g0 + 4)
    e(f"v_max_f32 v{g0}, 0, v{g0}")
    e(f"v_mul_f32 v{g0}, v{g0}, v{g0+4}")
    rnd(g0)
    e(f"s_add_u32 s10, s8, {t}")
    e("s_cmp_lt_u32 s10, s9")
    e("s_cselect_b32 s10, 1.0, 0")
    e(f"v_mul_f32 v{28+t}, s10, v{g0}")
for k in range(8):
    e(f"v_mov_b32 v{ACC+k}, 0")
e("s_waitcnt vmcnt(0)")
for i in range(8):
    b = BUF + 4 * i
    for k in range(4):
        unpack(4, 5, b + k)
        e(f"v_fmac_f32 v{ACC+2*k}, v{8+i}, v4")
        e(f"v_fmac_f32 v{ACC+2*k+1}, v{8+i}, v5")
for t in range(3):
    b = 64 + 4 * t
    for k in range(4):
        unpack(4, 5, b + k)
        e(f"v_fmac_f32 v{ACC+2*k}, v{28+t}, v4")
        e(f"v_fmac_f32 v{ACC+2*k+1}, v{28+t}, v5")
e(f"s_lshl_b32 s7, s{sW}, 11")
e(f"s_add_u32 s7, s7, {Y1}")
e(f"v_lshlrev_b32 v4, 5, v{vL}")
e("v_add_u32 v4, s7, v4")
e(f"ds_write_b128 v4, v[{ACC}:{ACC+3}]")
e(f"ds_write_b128 v4, v[{ACC+4}:{ACC+7}] offset:16")
e("s_waitcnt lgkmcnt(0)")
e("s_barrier")
e(f"s_cmp_ge_u32 s{sW}, 8")
e("s_cbranch_scc1 L_pub_done")
e(f"v_lshlrev_b32 v4, 2, v{vTID}")
e(f"v_add_u32 v5, {Y1}, v4")
for i in range(16):
    e(f"ds_read_b32 v{80+i}, v5 offset:{2048*i}")
e("s_waitcnt lgkmcnt(0)")
for i in range(1, 16):
    e(f"v_add_f32 v80, v80, v{80+i}")
e("s_lshl_b32 s7, s2, 11")
e(f"buffer_store_dword v80, v4, {srd(WS_)}, s7 offen sc1")
e("s_waitcnt vmcnt(0)")
lab("L_pub_done")
e("s_barrier")
e(f"s_cmp_lg_u32 s{sW}, 0")
e("s_cbranch_scc1 L_atom_done")
e(f"s_lshl_b32 s7, s{sB}, 2")
e("v_mov_b32 v4, s7")
e("v_mov_b32 v5, 1")
e("v_cmp_eq_u32 vcc, 0, v0")
e("s_and_saveexec_b64 s[10:11], vcc")
e(f"buffer_atomic_add v5, v4, {srd(DBG_)}, 0 offen sc0 sc1")
e("s_waitcnt vmcnt(0)")
e(f"v_mov_b32 v6, {FLAG}")
e("ds_write_b32 v6, v5")
e("s_mov_b64 exec, s[10:11]")
e("s_waitcnt lgkmcnt(0)")
lab("L_atom_done")
e("s_barrier")
e(f"v_mov_b32 v6, {FLAG}")
e("ds_read_b32 v5, v6")
e("s_waitcnt lgkmcnt(0)")
e("v_readfirstlane_b32 s7, v5")
e("s_nop 3")
e("s_cmp_lg_u32 s7, 31")
e("s_cbranch_scc1 L_end")
e(f"s_cmp_ge_u32 s{sW}, 8")
e("s_cbranch_scc1 L_end")
e(f"v_lshlrev_b32 v4, 2, v{vTID}")
e(f"s_lshl_b32 s7, s{sB}, 16")
for hh in range(32):
    e(f"s_add_u32 s8, s7, {hh*2048}")
    e(f"buffer_load_dword v{64+hh}, v4, {srd(WS_)}, s8 offen sc1")
e(f"v_lshlrev_b32 v5, 1, v{vTID}")
e(f"buffer_load_ushort v6, v5, {srd(X_)}, 0 offen")
e("s_waitcnt vmcnt(0)")
for hh in range(1, 32):
    e(f"v_add_f32 v64, v64, v{64+hh}")
e("v_lshlrev_b32 v6, 16, v6")
e("v_add_f32 v64, v64, v6")
e("v_cvt_pk_bf16_f32 v64, v64, v64")
e(f"buffer_store_short v64, v5, {srd(OUT_)}, 0 offen")
lab("L_end")
e("s_endpgm")

hdr = open(f"cdna_kernels/{NAME}.s.ref").read().split("\n")
head = []
for ln in hdr:
    if ln.startswith("; @launch"):
        head.append(f"; @launch grid=(256,1,1) block=(1024,1,1) lds={LDS_BYTES}")
        continue
    if ln.startswith(".amdgcn_target"):
        break
    head.append(ln)
txt = "\n".join(head) + f"""
.amdgcn_target "amdgcn-amd-amdhsa--gfx950"
.text
.globl {NAME}_kernel
.p2align 8
.type {NAME}_kernel,@function
""" + "\n".join(L) + f"""
.section .rodata,"a"
.p2align 6
.amdhsa_kernel {NAME}_kernel
  .amdhsa_next_free_vgpr 128
  .amdhsa_next_free_sgpr 96
  .amdhsa_accum_offset 128
  .amdhsa_group_segment_fixed_size 0
  .amdhsa_kernarg_size 96
  .amdhsa_user_sgpr_count 2
  .amdhsa_user_sgpr_kernarg_segment_ptr 1
  .amdhsa_system_sgpr_workgroup_id_x 1
.end_amdhsa_kernel
"""
open(OUTF or f"cdna_kernels/{NAME}.s", "w").write(txt)
print("wrote", len(L), "lines")
```

```python
import sys

NAME = "parallel_sum__gqa_block_cached__glu_gated_reglu__decode"
NT = " nt"
NB = 8
DEEP = "--nodeep" not in sys.argv
EARLYW = "--noearly" not in sys.argv
SKIPEPI = "--skip-epi" in sys.argv
BAR = 0
for a in sys.argv[1:]:
    if a.startswith("--bar="):
        BAR = int(a[6:])
STAMP = "--stamp" in sys.argv
OUTF = None
for a in sys.argv[1:]:
    if a.startswith("--out="):
        OUTF = a[6:]

L = []
NOWQ = "--nowq" in sys.argv
NOFF = "--noff" in sys.argv
NOWO = "--nowo" in sys.argv
def e(s):
    if s.startswith("buffer_load"):
        if NOWQ and "s[48:51]" in s: return
        if NOFF and ("s[56:59]" in s or "s[60:63]" in s): return
        if NOWO and ("s[52:55]" in s or "s[64:67]" in s): return
        if "--allnt" in sys.argv and not s.endswith(" nt") and any(r in s for r in ("s[48:51]","s[56:59]","s[60:63]","s[52:55]","s[64:67]")): s += " nt"
        if "--ntq" in sys.argv and not s.endswith(" nt") and any(r in s for r in ("s[48:51]",)): s += " nt"
        if "--ntf" in sys.argv and not s.endswith(" nt") and any(r in s for r in ("s[56:59]","s[60:63]")): s += " nt"
        if "--nto" in sys.argv and not s.endswith(" nt") and any(r in s for r in ("s[52:55]","s[64:67]")): s += " nt"
    L.append("    " + s)
def lab(s):
    L.append(s + ":")
def c(s):
    L.append("    ; " + s)

XN   = 0
PQ   = 2048
OST  = 544
FP   = PQ + 64 * OST
P2Q  = FP + 8192
MARR = P2Q + 2048
LARR = MARR + 256
FLAG = LARR + 256
Y1   = FLAG + 256
LDS_BYTES = Y1 + 32768
O1 = PQ

sB, sH, sW = 4, 5, 6
K_, V_, WQ_, WO_, WG_, WU_, WD_, X_, OUT_, DBG_, WS_ = 40, 44, 48, 52, 56, 60, 64, 68, 72, 76, 80
sCS, sNC = 90, 91
def srd(r): return f"s[{r}:{r+3}]"

vTID, vL, vK = 0, 1, 2
BUF = 32
SC = 64
EXT = 96
vQ = 16
ACC = 20
vFF = 13
T = 32

TS = [88, 89, 96, 97, 98, 99, 100, 101]
def ts(k):
    if not STAMP: return
    e("s_memrealtime s[94:95]")
    e("s_waitcnt lgkmcnt(0)")
    e(f"s_mov_b32 s{TS[k]}, s94")

WGST = "--wgst" in sys.argv
PST = "--pst" in sys.argv
STW = 0
for a in sys.argv[1:]:
    if a.startswith("--stw="):
        STW = int(a[6:])
PST2 = "--pst2" in sys.argv
def pst(k):
    if PST and not PST2: wst(k, True)
    if PST2 and k == 3: wst(1, True)
    if PST2 and k == 4: wst(4, True)
def pst2(k):
    if PST2: wst(k, True)
def wst(k, force=False):
    if not WGST: return
    if PST and not force and k in (1, 2, 3, 4): return
    e("s_memrealtime s[94:95]")
    e("s_waitcnt lgkmcnt(0)")
    e(f"s_mov_b32 s{TS[k]}, s94")
def wst_store():
    if not WGST: return
    e(f"s_cmp_lg_u32 s{sW}, {STW}")
    e("s_cbranch_scc1 L_wst_skip")
    e("s_lshl_b32 s7, s2, 5")
    e("s_add_u32 s7, s7, 524288")
    e("v_mov_b32 v9, s7")
    e("s_mov_b64 s[10:11], exec")
    e("s_mov_b64 exec, 1")
    for k in range(6):
        e(f"v_mov_b32 v8, s{TS[k]}")
        e(f"buffer_store_dword v8, v9, {srd(WS_)}, 0 offen offset:{4*k}")
    e("s_mov_b64 exec, s[10:11]")
    lab("L_wst_skip")

Q = []
def issued(tag):
    Q.append(tag)
def wait_for(tag):
    idx = max(i for i, t in enumerate(Q) if t == tag)
    n = len(Q) - 1 - idx
    assert n < 64
    e(f"s_waitcnt vmcnt({n})")

def rnd(v):
    e(f"v_cvt_pk_bf16_f32 v{v}, v{v}, v{v}")
    e(f"v_lshlrev_b32 v{v}, 16, v{v}")

def row_reduce_add(v):
    for st in (8, 4, 2, 1):
        e("s_nop 1")
        e(f"v_add_f32_dpp v{v}, v{v}, v{v} row_ror:{st} row_mask:0xf bank_mask:0xf")

def wave_sum_from_rows(v, dst):
    e("s_nop 1")
    e(f"v_readlane_b32 s84, v{v}, 0")
    e(f"v_readlane_b32 s85, v{v}, 16")
    e(f"v_readlane_b32 s86, v{v}, 32")
    e(f"v_readlane_b32 s87, v{v}, 48")
    e("s_nop 1")
    e(f"v_mov_b32 v{dst}, s84")
    e(f"v_add_f32 v{dst}, s85, v{dst}")
    e(f"v_add_f32 v{dst}, s86, v{dst}")
    e(f"v_add_f32 v{dst}, s87, v{dst}")

def xrow(v, t, op):
    for sw in ("v_permlane16_swap_b32", "v_permlane32_swap_b32"):
        e(f"v_mov_b32 v{t}, v{v}")
        e("s_nop 1")
        e(f"{sw} v{v}, v{t}")
        e("s_nop 1")
        e(f"{op} v{v}, v{v}, v{t}")

def row_reduce(v, op):
    for st in (8, 4, 2, 1):
        e("s_nop 1")
        e(f"{op}_dpp v{v}, v{v}, v{v} row_ror:{st} row_mask:0xf bank_mask:0xf")

def unpack(dst_lo, dst_hi, src):
    e(f"v_lshlrev_b32 v{dst_lo}, 16, v{src}")
    e(f"v_and_b32 v{dst_hi}, 0xffff0000, v{src}")

def make_srd(r, plo, phi, off_sgpr, nbytes_sgpr_or_imm):
    if off_sgpr is None:
        e(f"s_mov_b32 s{r}, s{plo}")
        e(f"s_and_b32 s{r+1}, s{phi}, 0xffff")
    else:
        e(f"s_add_u32 s{r}, s{plo}, s{off_sgpr}")
        e(f"s_addc_u32 s{r+1}, s{phi}, 0")
        e(f"s_and_b32 s{r+1}, s{r+1}, 0xffff")
    e(f"s_mov_b32 s{r+2}, {nbytes_sgpr_or_imm}")
    e(f"s_mov_b32 s{r+3}, 0x00020000")

lab(f"{NAME}_kernel")
e("s_cmp_ge_u32 s2, 256")
e("s_cbranch_scc1 L_end")
e("s_load_dwordx16 s[16:31], s[0:1], 0")
e("s_load_dwordx8 s[32:39], s[0:1], 64")
e(f"s_lshr_b32 s{sB}, s2, 5")
e(f"s_and_b32 s{sH}, s2, 31")
e(f"v_and_b32 v{vL}, 63, v{vTID}")
e(f"v_lshrrev_b32 v3, 6, v{vTID}")
e("s_nop 0")
e(f"v_readfirstlane_b32 s{sW}, v3")
e(f"s_min_u32 s7, s{sH}, 12")
e(f"s_mul_i32 s{sCS}, s{sH}, 5")
e(f"s_add_u32 s{sCS}, s{sCS}, s7")
e(f"s_cmp_lt_u32 s{sH}, 12")
e(f"s_cselect_b32 s{sNC}, 6, 5")
e("s_waitcnt lgkmcnt(0)")
e("s_lshl_b32 s7, s2, 20")
make_srd(K_, 18, 19, 7, 1048576)
make_srd(V_, 20, 21, 7, 1048576)
e(f"s_lshl_b32 s7, s{sH}, 8")
e("s_sub_u32 s8, 4194304, s7")
make_srd(WQ_, 22, 23, 7, "s8")
e(f"s_lshl_b32 s7, s{sH}, 17")
if "--wopriv" in sys.argv:
    e("s_lshl_b32 s7, s2, 17")
    e("s_add_u32 s7, s7, 0x1000000")
    make_srd(WO_, 38, 39, 7, 131072)
else:
    make_srd(WO_, 24, 25, 7, 131072)
make_srd(WG_, 28, 29, None, 512 * 2752)
make_srd(WU_, 30, 31, None, 512 * 2752)
make_srd(WD_, 32, 33, None, 1376 * 1024)
e(f"s_lshl_b32 s7, s{sB}, 10")
make_srd(X_, 16, 17, 7, 1024)
make_srd(OUT_, 34, 35, 7, 1024)
make_srd(DBG_, 36, 37, None, 256)
make_srd(WS_, 38, 39, None, 256 * 2048 + (16384 if WGST else 0))
wst(0)

e(f"v_lshlrev_b32 v3, 4, v{vL}")
e(f"buffer_load_dwordx4 v[4:7], v3, {srd(X_)}, 0 offen"); issued("x")
ILV = "--ilv" in sys.argv
e(f"s_lshl_b32 s7, s{sW}, {10 if ILV else 16}")
e(f"v_add_u32 v{vK}, s7, v3")
e(f"v_lshrrev_b32 v8, 4, v{vL}")
e(f"s_lshl_b32 s7, s{sW}, 5")
e(f"v_add_u32 v8, s7, v8")
e(f"v_lshlrev_b32 v9, 13, v8")
e(f"v_and_b32 v10, 15, v{vL}")
e(f"v_lshl_add_u32 v9, v10, 4, v9")
for j in range(8):
    e(f"s_mov_b32 s7, {j*32768}")
    e(f"buffer_load_dwordx4 v[{SC+4*j}:{SC+4*j+3}], v9, {srd(WQ_)}, s7 offen"); issued("wq")
e(f"v_lshrrev_b32 v11, 3, v{vL}")
e(f"s_lshl_b32 s7, s{sW}, 3")
e(f"v_add_u32 v11, s7, v11")
e("s_movk_i32 s7, 2752")
e("v_mul_lo_u32 v12, v11, s7")
e(f"v_and_b32 v{vFF}, 7, v{vL}")
e(f"v_add_u32 v{vFF}, s{sCS}, v{vFF}")
e(f"v_lshl_add_u32 v{vFF}, v{vFF}, 4, v12")

def slot(t):
    if DEEP and t < 32 and (t // 8) % 2 == 1:
        return EXT + 4 * (t % 8)
    return BUF + 4 * (t % 8)
def prev_in_slot(t):
    s = slot(t)
    for u in range(t - 1, -1, -1):
        if slot(u) == s:
            return u
    return None
NSTREAM = 136 if EARLYW else 144
def stream_load(t):
    b = slot(t)
    if t < 64 or 72 <= t < 136:
        r = K_ if t < 64 else V_
        ii = t if t < 64 else t - 72
        so = (ii // 4) * 4096
        if ILV:
            so = ii * 16384
            ii = 0
        if so == 0:
            sreg = "0"
        else:
            e(f"s_mov_b32 s92, {so}")
            sreg = "s92"
        off = (ii % 4) * 1024
        e(f"buffer_load_dwordx4 v[{b}:{b+3}], v{vK}, {srd(r)}, {sreg} offen" + (f" offset:{off}" if off else "") + NT)
    elif t < 72:
        m, i = (t - 64) // 4, (t - 64) % 4
        e(f"s_mov_b32 s92, {i*128*2752}")
        e(f"buffer_load_dwordx4 v[{b}:{b+3}], v{vFF}, {srd(WG_ if m == 0 else WU_)}, s92 offen")
    else:
        ii = t - 136
        e(f"s_movk_i32 s92, {4096*(ii//4)}")
        e(f"buffer_load_dwordx4 v[{b}:{b+3}], v31, {srd(WO_)}, s92 offen offset:{(ii%4)*1024}")
    issued(("t", t))
def after_consume(tiles):
    for t in range(NSTREAM):
        p = prev_in_slot(t)
        if p is not None and p in tiles:
            stream_load(t)

e(f"s_lshl_b32 s7, s{sW}, 13")
e(f"v_add_u32 v31, s7, v3")
if "--bar0" in sys.argv:
    e("s_barrier")
LATE = 0
for a in sys.argv[1:]:
    if a.startswith("--late="):
        LATE = int(a[7:])
def issue_deep():
    for t in range(8, NSTREAM):
        if prev_in_slot(t) is None:
            stream_load(t)
for t in range(8):
    stream_load(t)
if LATE == 0:
    issue_deep()

wait_for("x")
pst(1)
for k in range(4):
    unpack(8 + 2 * k if k < 2 else 24 + 2 * (k - 2), 9 + 2 * k if k < 2 else 25 + 2 * (k - 2), 4 + k)
XR = [8, 9, 10, 11, 24, 25, 26, 27]
e(f"v_add_f32 v28, v{XR[0]}, v{XR[1]}")
e(f"v_add_f32 v29, v{XR[2]}, v{XR[3]}")
e(f"v_add_f32 v30, v{XR[4]}, v{XR[5]}")
e("v_add_f32 v28, v28, v29")
e(f"v_add_f32 v29, v{XR[6]}, v{XR[7]}")
e("v_add_f32 v30, v30, v29")
e("v_add_f32 v28, v28, v30")
row_reduce_add(28)
wave_sum_from_rows(28, 29)
e("v_mul_f32 v29, 0x3b000000, v29")
e(f"v_sub_f32 v4, v{XR[0]}, v29")
e("v_mul_f32 v28, v4, v4")
for k in range(1, 8):
    e(f"v_sub_f32 v4, v{XR[k]}, v29")
    e("v_fmac_f32 v28, v4, v4")
row_reduce_add(28)
wave_sum_from_rows(28, 30)
e("v_mul_f32 v30, 0x3b000000, v30")
rnd(29)
rnd(30)
e("v_add_f32 v30, 0x3727c5ac, v30")
rnd(30)
e("v_sqrt_f32 v30, v30")
e("s_nop 0")
rnd(30)
e("v_rcp_f32 v30, v30")
e("s_nop 0")
for k in range(8):
    e(f"v_sub_f32 v{XR[k]}, v{XR[k]}, v29")
    rnd(XR[k])
    e(f"v_mul_f32 v{XR[k]}, v{XR[k]}, v30")
    rnd(XR[k])
e(f"v_lshlrev_b32 v3, 5, v{vL}")
e(f"ds_write_b128 v3, v[8:11] offset:{XN}")
e(f"ds_write_b128 v3, v[24:27] offset:{XN+16}")
e("s_waitcnt lgkmcnt(0)")
if LATE == 1:
    issue_deep()
e(f"v_lshrrev_b32 v3, 4, v{vL}")
e(f"s_lshl_b32 s7, s{sW}, 5")
e("v_add_u32 v3, s7, v3")
e("v_lshlrev_b32 v3, 2, v3")
QX = [8, 9, 10, 11, 12, 14, 15, 28]
for j in range(8):
    e(f"ds_read_b32 v{QX[j]}, v3 offset:{XN+16*j}")
for k in range(8):
    e(f"v_mov_b32 v{ACC+k}, 0")
pst(2)
wait_for("wq")
pst(3)
e("s_waitcnt lgkmcnt(0)")
for j in range(8):
    for k in range(4):
        unpack(4, 5, SC + 4 * j + k)
        e(f"v_fmac_f32 v{ACC+2*k}, v{QX[j]}, v4")
        e(f"v_fmac_f32 v{ACC+2*k+1}, v{QX[j]}, v5")
e(f"v_lshrrev_b32 v4, 4, v{vL}")
e(f"s_lshl_b32 s7, s{sW}, 2")
e("v_add_u32 v4, s7, v4")
e("v_lshlrev_b32 v4, 9, v4")
e(f"v_and_b32 v5, 15, v{vL}")
e("v_lshl_add_u32 v4, v5, 5, v4")
e(f"v_mov_b32 v7, v4")
e(f"ds_write_b128 v4, v[{ACC}:{ACC+3}] offset:{PQ}")
e(f"ds_write_b128 v4, v[{ACC+4}:{ACC+7}] offset:{PQ+16}")
if LATE == 2:
    issue_deep()
e("s_waitcnt lgkmcnt(0)")
pst2(2)
e("s_barrier")
pst2(3)
e(f"s_cmp_ge_u32 s{sW}, 8")
e("s_cbranch_scc1 L_st2_done")
e(f"v_and_b32 v4, 127, v{vTID}")
e(f"v_lshrrev_b32 v5, 7, v{vTID}")
e("v_lshlrev_b32 v6, 13, v5")
e("v_lshl_add_u32 v6, v4, 2, v6")
for i in range(16):
    e(f"ds_read_b32 v{64+i}, v6 offset:{PQ+512*i}")
e("s_waitcnt lgkmcnt(0)")
for i in range(1, 16):
    e(f"v_add_f32 v64, v64, v{64+i}")
e("v_lshlrev_b32 v6, 9, v5")
e("v_lshl_add_u32 v6, v4, 2, v6")
e(f"v_add_u32 v6, {P2Q}, v6")
e("ds_write_b32 v6, v64")
e("s_waitcnt lgkmcnt(0)")
lab("L_st2_done")
e("s_barrier")
e(f"v_and_b32 v4, 15, v{vL}")
e("v_lshlrev_b32 v4, 5, v4")
e(f"v_add_u32 v4, {P2Q}, v4")
for p in range(4):
    e(f"ds_read_b128 v[{64+8*p}:{64+8*p+3}], v4 offset:{512*p}")
    e(f"ds_read_b128 v[{64+8*p+4}:{64+8*p+7}], v4 offset:{512*p+16}")
e("s_waitcnt lgkmcnt(0)")
for k in range(8):
    e(f"v_add_f32 v{64+k}, v{64+k}, v{72+k}")
    e(f"v_add_f32 v{80+k}, v{80+k}, v{88+k}")
    e(f"v_add_f32 v{64+k}, v{64+k}, v{80+k}")
for k in range(4):
    e(f"v_cvt_pk_bf16_f32 v{vQ+k}, v{64+2*k}, v{64+2*k+1}")
e("s_nop 1")

c("K phase")
pst(4)
wst(1)
for g in range(16):
    if BAR and g and (4 * g) % BAR == 0:
        e("s_barrier")
    wait_for(("t", 4 * g + 3))
    for k in range(4):
        for cc in range(4):
            i = 4 * g + cc
            b = slot(i)
            src2 = "0" if k == 0 else f"v{SC+i}"
            e(f"v_dot2_f32_bf16 v{SC+i}, v{b+k}, v{vQ+k}, {src2}")
    after_consume(range(4 * g, 4 * g + 4))
    for st in (8, 4, 2, 1):
        for cc in range(4):
            i = 4 * g + cc
            e(f"v_add_f32_dpp v{SC+i}, v{SC+i}, v{SC+i} row_ror:{st} row_mask:0xf bank_mask:0xf")
    for cc in range(4):
        i = SC + 4 * g + cc
        e(f"v_cvt_pk_bf16_f32 v{i}, v{i}, v{i}")
    for cc in range(4):
        i = SC + 4 * g + cc
        e(f"v_lshlrev_b32 v{i}, 16, v{i}")
    for cc in range(4):
        i = SC + 4 * g + cc
        e(f"v_mul_f32 v{i}, 0x3db504f3, v{i}")
    for cc in range(4):
        i = SC + 4 * g + cc
        e(f"v_cvt_pk_bf16_f32 v{i}, v{i}, v{i}")
    for cc in range(4):
        i = SC + 4 * g + cc
        e(f"v_lshlrev_b32 v{i}, 16, v{i}")

c("ffn gate/up")
e(f"v_lshrrev_b32 v4, 3, v{vL}")
e(f"s_lshl_b32 s7, s{sW}, 3")
e("v_add_u32 v4, s7, v4")
e("v_lshlrev_b32 v3, 2, v4")
for i in range(4):
    e(f"ds_read_b32 v{8+i}, v3 offset:{XN+512*i}")
e(f"s_lshl_b32 s7, s{sW}, 9")
e(f"s_add_u32 s7, s7, {FP}")
e(f"v_and_b32 v5, 7, v{vL}")
e("v_lshlrev_b32 v6, 5, v5")
e("v_add_u32 v6, s7, v6")
e("s_waitcnt lgkmcnt(0)")
for m in range(2):
    for k in range(8):
        e(f"v_mov_b32 v{ACC+k}, 0")
    for i in range(4):
        t = 64 + 4 * m + i
        wait_for(("t", t))
        b = slot(t)
        for k in range(4):
            unpack(4, 5, b + k)
            e(f"v_fmac_f32 v{ACC+2*k}, v{8+i}, v4")
            e(f"v_fmac_f32 v{ACC+2*k+1}, v{8+i}, v5")
        after_consume([t])
    e("s_nop 1")
    for k in range(8):
        e(f"v_add_f32_dpp v{ACC+k}, v{ACC+k}, v{ACC+k} row_ror:8 row_mask:0xf bank_mask:0xf")
    TT = [4, 5, 12, 14]
    for sw in ("v_permlane16_swap_b32", "v_permlane32_swap_b32"):
        for k0 in (0, 4):
            for k in range(4):
                e(f"v_mov_b32 v{TT[k]}, v{ACC+k0+k}")
            e("s_nop 1")
            for k in range(4):
                e(f"{sw} v{ACC+k0+k}, v{TT[k]}")
            e("s_nop 1")
            for k in range(4):
                e(f"v_add_f32 v{ACC+k0+k}, v{ACC+k0+k}, v{TT[k]}")
    e("s_mov_b64 s[10:11], exec")
    e("s_mov_b64 exec, 0xff")
    e(f"ds_write_b128 v6, v[{ACC}:{ACC+3}] offset:{256*m}")
    e(f"ds_write_b128 v6, v[{ACC+4}:{ACC+7}] offset:{256*m+16}")
    e("s_mov_b64 exec, s[10:11]")
    e("s_waitcnt lgkmcnt(0)")

c("row softmax")
e(f"v_max3_f32 v28, v{SC}, v{SC+1}, v{SC+2}")
for i in range(3, 63, 2):
    e(f"v_max3_f32 v28, v28, v{SC+i}, v{SC+i+1}")
e(f"v_max_f32 v28, v28, v{SC+63}")
e("v_mul_f32 v29, 0x3fb8aa3b, v28")
e("v_mov_b32 v30, 0")
e("s_mov_b32 s7, 0x3fb8aa3b")
for i in range(64):
    e(f"v_fma_f32 v{SC+i}, v{SC+i}, s7, -v29")
for i in range(64):
    e(f"v_exp_f32 v{SC+i}, v{SC+i}")
e("s_nop 0")
for i in range(64):
    e(f"v_add_f32 v30, v30, v{SC+i}")
for k in range(8):
    e(f"v_mov_b32 v{ACC+k}, 0")

c("V phase")
wst(2)
WOR = 64
WDR = 96
for i in range(64):
    t = 72 + i
    if BAR and i % BAR == 0:
        e("s_barrier")
    wait_for(("t", t))
    b = slot(t)
    for k in range(4):
        unpack(8 + 2 * k if k < 2 else 4 + 2 * (k - 2) if False else None or (8 + 2 * k), 9 + 2 * k, b + k) if False else None
    UP = [(4, 5), (8, 9), (10, 11), (14, 15)]
    for k in range(4):
        unpack(UP[k][0], UP[k][1], b + k)
    after_consume([t])
    for k in range(4):
        e(f"v_fmac_f32 v{ACC+2*k}, v{SC+i}, v{UP[k][0]}")
        e(f"v_fmac_f32 v{ACC+2*k+1}, v{SC+i}, v{UP[k][1]}")
    if EARLYW and i == 31:
        for ii in range(8):
            e(f"s_movk_i32 s92, {4096*(ii//4)}")
            e(f"buffer_load_dwordx4 v[{WOR+4*ii}:{WOR+4*ii+3}], v31, {srd(WO_)}, s92 offen offset:{(ii%4)*1024}" + (" nt" if "--wont" in sys.argv else ""))
            issued("wo")
    if EARLYW and i == 43:
        e(f"s_lshl_b32 s7, s{sCS}, 3")
        e(f"s_mul_i32 s8, s{sW}, 3")
        e("s_add_u32 s7, s7, s8")
        e("s_lshl_b32 s7, s7, 10")
        e(f"v_lshlrev_b32 v3, 4, v{vL}")
        for tt in range(3):
            e(f"buffer_load_dwordx4 v[{WDR+4*tt}:{WDR+4*tt+3}], v3, {srd(WD_)}, s7 offen" + (f" offset:{1024*tt}" if tt else ""))
            issued("wd")

c("epilogue")
if SKIPEPI:
    e("s_endpgm")
ts(0)
wst(3)
if not EARLYW:
    WOR = BUF
    WDR = 64
    T = 80
    e(f"s_lshl_b32 s7, s{sCS}, 3")
    e(f"s_mul_i32 s8, s{sW}, 3")
    e("s_add_u32 s7, s7, s8")
    e("s_lshl_b32 s7, s7, 10")
    e(f"v_lshlrev_b32 v3, 4, v{vL}")
    for tt in range(3):
        e(f"buffer_load_dwordx4 v[{WDR+4*tt}:{WDR+4*tt+3}], v3, {srd(WD_)}, s7 offen" + (f" offset:{1024*tt}" if tt else ""))
e(f"v_lshrrev_b32 v4, 4, v{vL}")
e(f"s_lshl_b32 s7, s{sW}, 2")
e("v_add_u32 v4, s7, v4")
e("v_lshlrev_b32 v4, 2, v4")
e(f"v_add_u32 v4, {MARR}, v4")
e("ds_write_b32 v4, v28")
e("s_waitcnt lgkmcnt(0)")
e("s_barrier")
ts(1)
wst(4)
e(f"v_lshlrev_b32 v5, 2, v{vL}")
e(f"ds_read_b32 v6, v5 offset:{MARR}")
e(f"v_lshrrev_b32 v8, 4, v{vL}")
e(f"s_lshl_b32 s7, s{sW}, 2")
e("v_add_u32 v8, s7, v8")
e(f"s_movk_i32 s7, {OST}")
e("v_mul_lo_u32 v8, v8, s7")
e(f"v_and_b32 v9, 15, v{vL}")
e("v_lshl_add_u32 v8, v9, 5, v8")
e("s_waitcnt lgkmcnt(0)")
row_reduce(6, "v_max_f32")
xrow(6, 9, "v_max_f32")
e("v_sub_f32 v6, v28, v6")
e("v_mul_f32 v6, 0x3fb8aa3b, v6")
e("v_exp_f32 v6, v6")
e("s_nop 0")
for k in range(8):
    e(f"v_mul_f32 v{ACC+k}, v{ACC+k}, v6")
e("v_mul_f32 v30, v30, v6")
e(f"ds_write_b128 v8, v[{ACC}:{ACC+3}] offset:{O1}")
e(f"ds_write_b128 v8, v[{ACC+4}:{ACC+7}] offset:{O1+16}")
e(f"ds_write_b32 v4, v30 offset:{LARR-MARR}")
e(f"v_lshrrev_b32 v9, 3, v{vL}")
e(f"s_movk_i32 s7, {OST}")
e("v_mul_lo_u32 v9, v9, s7")
e(f"v_and_b32 v10, 7, v{vL}")
e(f"s_lshl_b32 s7, s{sW}, 5")
e("v_lshl_add_u32 v9, v10, 2, v9")
e("v_add_u32 v9, s7, v9")
e(f"v_and_b32 v10, 15, v{vL}")
e(f"v_lshrrev_b32 v11, 4, v{vL}")
e("v_and_b32 v12, 1, v11")
e("v_lshl_add_u32 v12, v10, 1, v12")
e("v_lshlrev_b32 v12, 8, v12")
e("v_lshrrev_b32 v11, 1, v11")
e(f"s_mul_i32 s8, s{sW}, 3")
e("v_add_u32 v11, s8, v11")
e("v_lshl_add_u32 v12, v11, 2, v12")
e(f"v_add_u32 v12, {FP}, v12")
e("v_lshlrev_b32 v11, 2, v11")
e("v_sub_u32 v13, v12, v11")
e("s_add_u32 s7, s8, 2")
e("s_lshl_b32 s7, s7, 2")
e("v_add_u32 v13, s7, v13")
e("s_waitcnt lgkmcnt(0)")
e("s_barrier")
ts(2)
for i in range(8):
    e(f"ds_read_b32 v{T+i}, v9 offset:{O1+8*OST*i}")
e(f"ds_read_b32 v6, v5 offset:{LARR}")
e(f"ds_read_b32 v{T+8}, v12")
e(f"ds_read_b32 v{T+9}, v13")
e("s_waitcnt lgkmcnt(0)")
for i in (0, 2, 4, 6):
    e(f"v_add_f32 v{T+i}, v{T+i}, v{T+i+1}")
e(f"v_add_f32 v{T}, v{T}, v{T+2}")
e(f"v_add_f32 v{T+4}, v{T+4}, v{T+6}")
e(f"v_add_f32 v{T}, v{T}, v{T+4}")
e("s_nop 1")
for st in (8, 4, 2, 1):
    if st == 8:
        e(f"v_add_f32_dpp v{T}, v{T}, v{T} row_ror:8 row_mask:0xf bank_mask:0xf")
    else:
        e("s_nop 0")
    for r in (6, T + 8, T + 9):
        e(f"v_add_f32_dpp v{r}, v{r}, v{r} row_ror:{st} row_mask:0xf bank_mask:0xf")
for sw in ("v_permlane16_swap_b32", "v_permlane32_swap_b32"):
    e(f"v_mov_b32 v{T+1}, v{T}")
    e(f"v_mov_b32 v{T+2}, v6")
    e("s_nop 1")
    e(f"{sw} v{T}, v{T+1}")
    e(f"{sw} v6, v{T+2}")
    e("s_nop 1")
    e(f"v_add_f32 v{T}, v{T}, v{T+1}")
    e(f"v_add_f32 v6, v6, v{T+2}")
e("v_rcp_f32 v6, v6")
rnd(T + 8)
rnd(T + 9)
e(f"v_mul_f32 v{T}, v{T}, v6")
rnd(T)
e("s_nop 1")
SO = 16
for k in range(8):
    e(f"v_readlane_b32 s{SO+k}, v{T}, {k}")
for cidx, (r, ln) in enumerate([(T + 8, 0), (T + 8, 16), (T + 8, 32), (T + 8, 48), (T + 9, 0), (T + 9, 16)]):
    e(f"v_readlane_b32 s{32+cidx}, v{r}, {ln}")
e("s_nop 1")
for k in range(8):
    e(f"s_lshr_b32 s{SO+8+k}, s{SO+k}, 16")
e(f"s_lshl_b32 s9, s{sNC}, 3")
for t in range(3):
    e(f"v_max_f32 v{28+t}, s{32+2*t}, 0")
    e(f"v_mul_f32 v{28+t}, s{33+2*t}, v{28+t}")
    rnd(28 + t)
    e(f"s_add_u32 s10, s8, {t}")
    e("s_cmp_lt_u32 s10, s9")
    e("s_cselect_b32 s10, -1, 0")
    e(f"v_and_b32 v{28+t}, s10, v{28+t}")
    e(f"v_lshrrev_b32 v{8+t}, 16, v{28+t}")
e("s_waitcnt vmcnt(0)")
for i in range(8):
    b = WOR + 4 * i
    for k in range(4):
        e(f"v_dot2_f32_bf16 v{ACC+2*k}, v{b+k}, s{SO+8+i}, " + ("0" if i == 0 else f"v{ACC+2*k}"))
        e(f"v_dot2_f32_bf16 v{ACC+2*k+1}, v{b+k}, s{SO+i}, " + ("0" if i == 0 else f"v{ACC+2*k+1}"))
for t in range(3):
    b = WDR + 4 * t
    for k in range(4):
        e(f"v_dot2_f32_bf16 v{ACC+2*k}, v{b+k}, v{8+t}, v{ACC+2*k}")
        e(f"v_dot2_f32_bf16 v{ACC+2*k+1}, v{b+k}, v{28+t}, v{ACC+2*k+1}")
e(f"s_lshl_b32 s7, s{sW}, 11")
e(f"s_add_u32 s7, s7, {Y1}")
e(f"v_lshlrev_b32 v4, 5, v{vL}")
e("v_add_u32 v4, s7, v4")
e(f"ds_write_b128 v4, v[{ACC}:{ACC+3}]")
e(f"ds_write_b128 v4, v[{ACC+4}:{ACC+7}] offset:16")
e("s_waitcnt lgkmcnt(0)")
e("s_barrier")
ts(3)
e(f"s_cmp_ge_u32 s{sW}, 8")
e("s_cbranch_scc1 L_pub_done")
e(f"v_lshlrev_b32 v4, 2, v{vTID}")
e(f"v_add_u32 v5, {Y1}, v4")
for i in range(16):
    e(f"ds_read_b32 v{80+i}, v5 offset:{2048*i}")
e("s_waitcnt lgkmcnt(0)")
for i in range(1, 16):
    e(f"v_add_f32 v80, v80, v{80+i}")
e("s_lshl_b32 s7, s2, 11")
e(f"buffer_store_dword v80, v4, {srd(WS_)}, s7 offen sc1")
e("s_waitcnt vmcnt(0)")
lab("L_pub_done")
e("s_barrier")
ts(4)
e(f"s_cmp_lg_u32 s{sW}, 0")
e("s_cbranch_scc1 L_atom_done")
e(f"s_lshl_b32 s7, s{sB}, 2")
e("v_mov_b32 v4, s7")
e("v_mov_b32 v5, 1")
e("v_cmp_eq_u32 vcc, 0, v0")
e("s_and_saveexec_b64 s[10:11], vcc")
e(f"buffer_atomic_add v5, v4, {srd(DBG_)}, 0 offen sc0 sc1")
e("s_waitcnt vmcnt(0)")
e(f"v_mov_b32 v6, {FLAG}")
e("ds_write_b32 v6, v5")
e("s_mov_b64 exec, s[10:11]")
e("s_waitcnt lgkmcnt(0)")
lab("L_atom_done")
e("s_barrier")
ts(5)
wst(5)
wst_store()
e(f"v_mov_b32 v6, {FLAG}")
e("ds_read_b32 v5, v6")
e("s_waitcnt lgkmcnt(0)")
e("v_readfirstlane_b32 s7, v5")
e("s_nop 3")
e("s_cmp_lg_u32 s7, 31")
e("s_cbranch_scc1 L_end")
e(f"s_cmp_ge_u32 s{sW}, 8")
e("s_cbranch_scc1 L_end")
e(f"v_lshlrev_b32 v4, 2, v{vTID}")
e(f"s_lshl_b32 s7, s{sB}, 16")
for hh in range(32):
    e(f"s_add_u32 s8, s7, {hh*2048}")
    e(f"buffer_load_dword v{64+hh}, v4, {srd(WS_)}, s8 offen sc1")
e(f"v_lshlrev_b32 v5, 1, v{vTID}")
e(f"buffer_load_ushort v6, v5, {srd(X_)}, 0 offen")
e("s_waitcnt vmcnt(0)")
ts(6)
for hh in range(1, 32):
    e(f"v_add_f32 v64, v64, v{64+hh}")
e("v_lshlrev_b32 v6, 16, v6")
e("v_add_f32 v64, v64, v6")
e("v_cvt_pk_bf16_f32 v64, v64, v64")
e(f"buffer_store_short v64, v5, {srd(OUT_)}, 0 offen")
if STAMP:
    e("s_waitcnt vmcnt(0)")
    ts(7)
    e(f"s_cmp_lg_u32 s{sW}, 0")
    e("s_cbranch_scc1 L_end")
    e(f"s_lshl_b32 s7, s{sB}, 5")
    e("s_add_u32 s7, s7, 32")
    e("v_mov_b32 v9, s7")
    for k in range(8):
        e(f"v_mov_b32 v8, s{TS[k]}")
        e(f"buffer_store_dword v8, v9, {srd(DBG_)}, 0 offen offset:{4*k}")
lab("L_end")
e("s_endpgm")

hdr = open(f"cdna_kernels/{NAME}.s.ref").read().split("\n")
head = []
for ln in hdr:
    if ln.startswith("; @launch"):
        head.append(f"; @launch grid=(256,1,1) block=(1024,1,1) lds={LDS_BYTES}")
        continue
    if ln.startswith(".amdgcn_target"):
        break
    head.append(ln)
txt = "\n".join(head) + f"""
.amdgcn_target "amdgcn-amd-amdhsa--gfx950"
.text
.globl {NAME}_kernel
.p2align 8
.type {NAME}_kernel,@function
""" + "\n".join(L) + f"""
.section .rodata,"a"
.p2align 6
.amdhsa_kernel {NAME}_kernel
  .amdhsa_next_free_vgpr 128
  .amdhsa_next_free_sgpr 102
  .amdhsa_accum_offset 128
  .amdhsa_group_segment_fixed_size 0
  .amdhsa_kernarg_size 96
  .amdhsa_user_sgpr_count 2
  .amdhsa_user_sgpr_kernarg_segment_ptr 1
  .amdhsa_system_sgpr_workgroup_id_x 1
.end_amdhsa_kernel
"""
open(OUTF or f"cdna_kernels/{NAME}.s", "w").write(txt)
print("wrote", len(L), "lines, lds", LDS_BYTES)
```
